```python
import torch

def _softmax(x, axis=-1):
    return torch.softmax(x, dim=axis)
def _gelu(x):
    return torch.nn.functional.gelu(x, approximate="tanh")
def _silu(x):
    return torch.nn.functional.silu(x)
def _sigmoid(x):
    return torch.sigmoid(x)
def _layernorm(x, axis=-1, eps=1e-5):
    m = x.mean(dim=axis, keepdim=True)
    v = x.var(dim=axis, keepdim=True, unbiased=False)
    return (x - m) / torch.sqrt(v + eps)
def _scatter_add(tgt, idx, src, axis=0):
    return tgt.clone().index_add_(axis, idx, src)
def _segment_sum(src, seg, n):
    out = torch.zeros((n,) + src.shape[1:], dtype=src.dtype)
    return out.index_add_(0, seg, src)
def _pad(x, pw):
    flat = tuple(v for pair in reversed(pw) for v in pair)
    return torch.nn.functional.pad(x, flat)

kernel_name = 'sequential_preLN__mha_block_cached__geglu_ffn__decode'

def setup_inputs():

    _w = (lambda a: (lambda t: t.to(torch.bfloat16) if t.is_floating_point() else t)(torch.as_tensor(a)))
    def _A_setup():
        B, Sq, D = 2, 1, 640
        H, Sk, Dh = 32, 16384, 192
        return {
            "x": _w((lambda *s: torch.randn(*s, dtype=torch.bfloat16) * 0.05)(B, Sq, D)),
            "k_cache": _w((lambda *s: torch.randn(*s, dtype=torch.bfloat16) * 3.2)(B, H, Sk, Dh)),
            "v_cache": _w((lambda *s: torch.randn(*s, dtype=torch.bfloat16) * 0.4)(B, H, Sk, Dh)),
            "wq": _w((lambda *s: torch.randn(*s, dtype=torch.bfloat16) * 3.2)(D, H * Dh) * (D ** -0.5)),
            "wo": _w((lambda *s: torch.randn(*s, dtype=torch.bfloat16) * 0.4)(H * Dh, D) * ((H * Dh) ** -0.5)),
        }
    _A_in = _A_setup()

    def _B_setup():
        B, S, D, F = 2, 1, 640, 1536
        return {
            "x": _w((lambda *s: torch.randn(*s, dtype=torch.bfloat16) * 0.05)(B, S, D)),
            "w_gate": _w((lambda *s: torch.randn(*s, dtype=torch.bfloat16) * 0.05)(D, F)),
            "w_up": _w((lambda *s: torch.randn(*s, dtype=torch.bfloat16) * 0.05)(D, F)),
            "w_down": _w((lambda *s: torch.randn(*s, dtype=torch.bfloat16) * 0.05)(F, D)),
        }
    _B_in = _B_setup()

    return {
        "A_x": _A_in["x"],
        "A_k_cache": _A_in["k_cache"],
        "A_v_cache": _A_in["v_cache"],
        "A_wq": _A_in["wq"],
        "A_wo": _A_in["wo"],
        "B_x": _B_in["x"],
        "B_w_gate": _B_in["w_gate"],
        "B_w_up": _B_in["w_up"],
        "B_w_down": _B_in["w_down"],
    }

def reference(A_x, A_k_cache, A_v_cache, A_wq, A_wo, B_x, B_w_gate, B_w_up, B_w_down):
    def _A_ref(x, k_cache, v_cache, wq, wo):
        B, Sq, D = x.shape
        H, Dh = 32, 192
        q = (lambda x, *d: x.permute(*d))((x @ wq).reshape(B, Sq, H, Dh), 0, 2, 1, 3)
        scores = torch.einsum("bhqd,bhkd->bhqk", q, k_cache) * (Dh ** -0.5)
        p = _softmax(scores, axis=-1)
        o = torch.einsum("bhqk,bhkd->bhqd", p, v_cache)
        return (lambda x, *d: x.permute(*d))(o, 0, 2, 1, 3).reshape(B, Sq, H * Dh) @ wo

    def _B_ref(x, w_gate, w_up, w_down):
        return (_gelu(x @ w_gate) * (x @ w_up)) @ w_down

    x = A_x
    h = x + _A_ref(_layernorm(x, axis=-1), A_k_cache, A_v_cache, A_wq, A_wo)
    h2 = h + _B_ref(_layernorm(h, axis=-1), B_w_gate, B_w_up, B_w_down)
    return h2
```

```python
import sys, struct, math

NAME = "sequential_preLN__mha_block_cached__geglu_ffn__decode"
TS = "--ts" in sys.argv
OUT = [a for a in sys.argv[1:] if not a.startswith("--")]
OUT = OUT[0] if OUT else f"cdna_kernels/{NAME}.s"

def f32(x): return struct.unpack("<I", struct.pack("<f", x))[0]
def hx(x): return "0x%08x" % (x & 0xffffffff)

KVB = 402653184
BATCHB = 201326592
HEADB = 6291456
NUNITS = 4096
P = 6
NSTATIC = P + 4
BASE = 32 * NSTATIC

W_CTR, W_QBUF, W_HBUF, W_ABUF, W_YBUF, W_PART, W_TS, W_SIZE = 0, 0x2000, 0x8000, 0x9000, 0x10000, 0x40000, 0xC0000, 0x100000
L_SYNC = 0
L_ML   = 64
L_H    = 128
L_XN   = 256
L_QRED = 5376
L_BQ   = 13568
L_PART = 19712
L_RED  = 44288
L_XN2  = 48384
L_ACT  = 50944
L_END  = 57088
LDS_BYTES = 57344

SENT = 0xFFFFFFFF
LOG2E = f32(1.4426950408889634)
SCALE = f32(192 ** -0.5)
NEGBIG = f32(-3.0e38)
POLL_LIMIT = 1 << 18

lines = []
def e(s): lines.append("    " + s)
def lab(s): lines.append(s + ":")
def c(s): lines.append("    ; " + s)
def vr(a, n): return f"v[{a}:{a+n-1}]"
def sr(a, n): return f"s[{a}:{a+n-1}]"
DPPM = "row_mask:0xf bank_mask:0xf"

sWG, sWAVE = 2, 3
sH, sX, sRHO, sSW = 4, 5, 6, 7
sT0, sT1, sT2, sT3, sT4, sT5 = 8, 9, 10, 11, 12, 13
sCNT = 14
pX, pK, pV, pWQ, pWO, pBX, pWG, pWU, pWD, pOUT, pDBG, pWS = 16, 18, 20, 22, 24, 26, 28, 30, 32, 34, 36, 38
dK, dV = 40, 44
dA, dB = 40, 44
pCTR = 48
sHB, sUa, sUb, sOa, sOb, sCL, sLIM, sCB = 50, 51, 52, 53, 54, 55, 56, 57
sSCALE, sL2E = 58, 59
sEX = 60
sR0 = 62
dWS = 68
dXS = 72
dO = 76
sTSB = 80
sROLE = 82
sSEL0, sSEL1 = 83, 84
sJ = 85

ts_count = [0]
def stamp(idx):
    if not TS: return
    e(f"s_memrealtime {sr(sTSB,2)}")
    e("s_waitcnt lgkmcnt(0)")
    e(f"v_mov_b32 v62, s{sTSB}")
    e(f"s_lshl_b32 s{sTSB}, s{sWG}, 3")
    e(f"s_add_u32 s{sTSB}, s{sTSB}, s{sWAVE}")
    e(f"s_lshl_b32 s{sTSB}, s{sTSB}, 6")
    e(f"s_add_u32 s{sTSB}, s{sTSB}, {W_TS + 4*idx}")
    e(f"v_mov_b32 v63, s{sTSB}")
    e(f"global_store_dword v63, v62, {sr(pWS,2)}")

def srd(d, p, size):
    e(f"s_mov_b32 s{d}, s{p}")
    e(f"s_mov_b32 s{d+1}, s{p+1}")
    e(f"s_mov_b32 s{d+2}, {size}")
    e(f"s_mov_b32 s{d+3}, 0x00020000")

def mfma(d, a, b, cc):
    cs = "0" if cc is None else vr(cc, 4)
    e(f"v_mfma_f32_16x16x32_bf16 {vr(d,4)}, {vr(a,4)}, {vr(b,4)}, {cs}")

def masks(vm, vlane, t0, t1):
    e(f"v_and_b32 v{t0}, 1, v{vlane}")
    e(f"v_mov_b32 v{t1}, 0xffff")
    e(f"v_lshlrev_b32 v{t0}, 4, v{t0}")
    e(f"v_lshlrev_b32 v{t1}, v{t0}, v{t1}")
    e(f"v_bfe_u32 v{t0}, v{vlane}, 1, 2")
    for r in range(4):
        e(f"v_cmp_eq_u32 vcc, {r}, v{t0}")
        e("s_nop 1")
        e(f"v_cndmask_b32 v{vm+r}, 0, v{t1}, vcc")

def allsum16(v, op="v_add_f32"):
    for r in (8, 4, 2, 1):
        e("s_nop 1")
        e(f"{op}_dpp v{v}, v{v}, v{v} row_ror:{r} {DPPM}")

def swapsum(v, t, which, op="v_add_f32"):
    e(f"v_mov_b32 v{t}, v{v}")
    e("s_nop 1")
    e(f"v_permlane{which}_swap_b32 v{v}, v{t}")
    e("s_nop 1")
    e(f"{op} v{v}, v{v}, v{t}")

def rnd_bf16(v):
    e(f"v_cvt_pk_bf16_f32 v{v}, v{v}, v{v}")
    e(f"v_lshlrev_b32 v{v}, 16, v{v}")

def layernorm(vin, vf, vt, vout, dup):
    for k in range(10):
        e(f"v_lshlrev_b32 v{vf+2*k}, 16, v{vin+k}")
        e(f"v_and_b32 v{vf+2*k+1}, 0xffff0000, v{vin+k}")
    s, s2, mean, t, den = vt, vt+1, vt+2, vt+3, vt+4
    e(f"v_add_f32 v{s}, v{vf}, v{vf+1}")
    e(f"v_add_f32 v{s2}, v{vf+2}, v{vf+3}")
    for k in range(4, 20, 2):
        e(f"v_add_f32 v{s}, v{s}, v{vf+k}")
        e(f"v_add_f32 v{s2}, v{s2}, v{vf+k+1}")
    e(f"v_add_f32 v{s}, v{s}, v{s2}")
    allsum16(s)
    swapsum(s, t, 16)
    e(f"v_mul_f32 v{mean}, {hx(f32(1.0/640))}, v{s}")
    e(f"v_mov_b32 v{s}, 0")
    e(f"v_mov_b32 v{s2}, 0")
    for k in range(0, 20, 2):
        e(f"v_sub_f32 v{t}, v{vf+k}, v{mean}")
        e(f"v_sub_f32 v{den}, v{vf+k+1}, v{mean}")
        e(f"v_fmac_f32 v{s}, v{t}, v{t}")
        e(f"v_fmac_f32 v{s2}, v{den}, v{den}")
    e(f"v_add_f32 v{s}, v{s}, v{s2}")
    allsum16(s)
    swapsum(s, t, 16)
    e(f"v_mul_f32 v{den}, {hx(f32(1.0/640))}, v{s}")
    rnd_bf16(den)
    e(f"v_add_f32 v{den}, {hx(f32(1e-5))}, v{den}")
    rnd_bf16(den)
    e(f"v_sqrt_f32 v{den}, v{den}")
    e("s_nop 0")
    rnd_bf16(den)
    e(f"v_rcp_f32 v{den}, v{den}")
    rnd_bf16(mean)
    for k in range(10):
        a, b = vf+2*k, vf+2*k+1
        e(f"v_sub_f32 v{a}, v{a}, v{mean}")
        e(f"v_sub_f32 v{b}, v{b}, v{mean}")
        e(f"v_cvt_pk_bf16_f32 v{t}, v{a}, v{b}")
        e(f"v_lshlrev_b32 v{a}, 16, v{t}")
        e(f"v_and_b32 v{b}, 0xffff0000, v{t}")
        e(f"v_mul_f32 v{a}, v{a}, v{den}")
        e(f"v_mul_f32 v{b}, v{b}, v{den}")
        if dup:
            e(f"v_cvt_pk_bf16_f32 v{vout+2*k}, v{a}, v{a}")
            e(f"v_cvt_pk_bf16_f32 v{vout+2*k+1}, v{b}, v{b}")
        else:
            e(f"v_cvt_pk_bf16_f32 v{vout+k}, v{a}, v{b}")

uid = [0]
def poll(loads, regs, vt, sleep=1):
    uid[0] += 1
    L = f"L_poll{uid[0]}"
    e(f"s_mov_b32 s{sCNT}, {POLL_LIMIT}")
    lab(L)
    for l in loads: e(l)
    e("s_waitcnt vmcnt(0)")
    rs = list(regs)
    if len(rs) == 1:
        e(f"v_mov_b32 v{vt}, v{rs[0]}")
    else:
        e(f"v_max_u32 v{vt}, v{rs[0]}, v{rs[1]}")
        rs = rs[2:]
        while len(rs) >= 2:
            e(f"v_max3_u32 v{vt}, v{vt}, v{rs[0]}, v{rs[1]}")
            rs = rs[2:]
        if rs:
            e(f"v_max_u32 v{vt}, v{vt}, v{rs[0]}")
    e(f"v_cmp_eq_u32 vcc, -1, v{vt}")
    e(f"s_cbranch_vccz {L}_done")
    if sleep: e(f"s_sleep {sleep}")
    e(f"s_sub_u32 s{sCNT}, s{sCNT}, 1")
    e(f"s_cbranch_scc0 {L}")
    lab(f"{L}_done")

hdr = open(f"cdna_kernels/{NAME}.s.ref").read().split("; Override launch")[0]
lines.append(hdr.rstrip("\n"))
lines.append(f"; @launch grid=(256,1,1) block=(512,1,1) lds={LDS_BYTES}")
lines.append('.amdgcn_target "amdgcn-amd-amdhsa--gfx950"')
lines.append(".text")
lines.append(f".globl {NAME}_kernel")
lines.append(".p2align 8")
lines.append(f".type {NAME}_kernel,@function")
lab(f"{NAME}_kernel")
e(f"s_cmp_ge_u32 s{sWG}, 256")
e("s_cbranch_scc1 L_end")
e(f"s_load_dwordx16 {sr(16,16)}, s[0:1], 0")
e(f"s_load_dwordx8 {sr(32,8)}, s[0:1], 64")
e("v_lshrrev_b32 v2, 6, v0")
e("v_and_b32 v1, 63, v0")
e(f"v_readfirstlane_b32 s{sWAVE}, v2")
e(f"s_lshr_b32 s{sH}, s{sWG}, 3")
e(f"s_and_b32 s{sX}, s{sWG}, 7")
e(f"s_add_u32 s{sRHO}, s{sX}, s{sH}")
e(f"s_and_b32 s{sRHO}, s{sRHO}, 7")
e(f"s_mov_b32 s{sL2E}, {hx(LOG2E)}")
e(f"s_cmp_ge_u32 s{sWAVE}, 4")
e("s_cbranch_scc1 L_service")

vLANE, vKO, vVO, vMK, vBQ, vACC, vD, vBP, vM, vL, vT, vL16 = 1, 2, 3, 4, 8, 20, 32, 36, 40, 41, 42, 48
def slotK(s): return 64 + 24*s
def slotV(s): return 64 + 24*s + 12
c("lane offsets")
e(f"v_lshrrev_b32 v{vT}, 4, v{vLANE}")
e(f"v_bfe_u32 v{vT+1}, v{vLANE}, 2, 2")
e(f"v_mul_u32_u24 v{vKO}, 768, v{vT+1}")
e(f"v_lshl_add_u32 v{vKO}, v{vT}, 6, v{vKO}")
e(f"v_and_b32 v{vT+1}, 3, v{vLANE}")
e(f"v_lshl_add_u32 v{vKO}, v{vT+1}, 4, v{vKO}")
e(f"v_mul_u32_u24 v{vVO}, 768, v{vT}")
e(f"v_and_b32 v{vT+1}, 15, v{vLANE}")
e(f"v_lshl_add_u32 v{vVO}, v{vT+1}, 4, v{vVO}")
e(f"s_mul_i32 s{sHB}, s{sH}, {HEADB}")
e(f"s_lshl_b32 s{sT0}, s{sWAVE}, 3")
e(f"s_add_u32 s{sT0}, s{sT0}, s{sX}")
e(f"s_mul_i32 s{sT1}, s{sT0}, 3072")
e(f"s_add_u32 s{sT1}, s{sT1}, s{sHB}")
e("s_waitcnt lgkmcnt(0)")
srd(dK, pK, KVB)
srd(dV, pV, KVB)
stamp(0)
def loadK(slot, so):
    for t in range(3):
        e(f"buffer_load_dwordx4 {vr(slotK(slot)+4*t,4)}, v{vKO}, {sr(dK,4)}, s{so} offen offset:{256*t} nt")
def loadV(slot, so):
    for t in range(3):
        e(f"buffer_load_dwordx4 {vr(slotV(slot)+4*t,4)}, v{vVO}, {sr(dV,4)}, s{so} offen offset:{256*t} nt")
XT = 1 if TS else 0
for k in range(2):
    loadK(k, sT1); loadV(k, sT1)
    e(f"s_add_u32 s{sT1}, s{sT1}, {32*3072}")
e("s_barrier")
c("setup while loads fly")
masks(vMK, vLANE, vT, vT+1)
e(f"v_lshlrev_b32 v{vL16}, 4, v{vLANE}")
e(f"s_mul_i32 s{sT2}, s{sWAVE}, 3072")
e(f"v_add_u32 v{vL16+1}, s{sT2}, v{vL16}")
for r in range(12): e(f"v_mov_b32 v{vACC+r}, 0")
e(f"v_mov_b32 v{vM}, {hx(NEGBIG)}")
e(f"v_mov_b32 v{vL}, 0")
for b in range(2):
    for t in range(3):
        e(f"ds_write_b128 v{vL16+1}, {vr(vACC,4)} offset:{L_PART + b*12288 + t*1024}")
e(f"s_lshl_b32 s{sT2}, s{sWAVE}, 2")
e(f"v_mov_b32 v{vL16+2}, s{sT2}")
for b in range(2):
    e(f"ds_write_b32 v{vL16+2}, v{vM} offset:{L_ML + b*32}")
    e(f"ds_write_b32 v{vL16+2}, v{vL} offset:{L_ML + b*32 + 16}")
e(f"s_mov_b32 s{sSCALE}, {hx(SCALE)}")
e(f"s_lshl_b32 s{sT2}, s{sH}, 8")
e(f"s_add_u32 s{pCTR}, s{pWS}, s{sT2}")
e(f"s_addc_u32 s{pCTR+1}, s{pWS+1}, 0")
e(f"s_mov_b32 s{sLIM}, 2048")
e(f"s_mov_b32 s{sCB}, 0")
c("paced fill of the prologue units")
for k in range(P):
    e("s_waitcnt vmcnt(6)")
    loadK(2+k, sT1); loadV(2+k, sT1)
    e(f"s_add_u32 s{sT1}, s{sT1}, {32*3072}")
e(f"s_mov_b32 s{sOa}, s{sT1}")
e(f"s_add_u32 s{sOb}, s{sT1}, {32*3072}")
e(f"s_mov_b32 s{sUa}, 0")
e(f"s_mov_b32 s{sUb}, 0")
e("s_waitcnt lgkmcnt(0)")
e("s_barrier")
for t in range(3):
    e(f"ds_read_b128 {vr(vBQ+4*t,4)}, v{vL16} offset:{L_BQ + t*1024}")
e("s_waitcnt lgkmcnt(0)")
if TS:
    e("s_waitcnt vmcnt(0)")
    stamp(1)
    e("s_waitcnt vmcnt(0)")
e(f"s_mov_b32 s{sCL}, 1")
e(f"s_atomic_add s{sCL}, {sr(pCTR,2)}, 0 glc")

rare = []
def flush():
    e("s_nop 7")
    e(f"s_mul_i32 s{sT2}, s{sCB}, 12288")
    e(f"v_add_u32 v{vT}, s{sT2}, v{vL16+1}")
    for t in range(3):
        e(f"ds_write_b128 v{vT}, {vr(vACC+4*t,4)} offset:{L_PART + t*1024}")
    e(f"v_add_f32_dpp v{vL}, v{vL}, v{vL} row_ror:8 {DPPM}")
    swapsum(vL, vT+1, 16)
    swapsum(vL, vT+1, 32)
    e(f"s_lshl_b32 s{sT2}, s{sCB}, 5")
    e(f"v_add_u32 v{vT}, s{sT2}, v{vL16+2}")
    e(f"ds_write_b32 v{vT}, v{vM} offset:{L_ML}")
    e(f"ds_write_b32 v{vT}, v{vL} offset:{L_ML+16}")
    e("s_waitcnt lgkmcnt(0)")

def unit(slot, mode, wK, wV, sU=None, sO=None, tag=""):
    if mode == "ring":
        e(f"s_cmp_ge_u32 s{sU}, s{sLIM}")
        e(f"s_cbranch_scc1 L_lim{tag}")
        lab(f"L_limback{tag}")
    e(f"s_waitcnt vmcnt({wK})")
    mfma(vD, slotK(slot), vBQ, None)
    mfma(vD, slotK(slot)+4, vBQ+4, vD)
    mfma(vD, slotK(slot)+8, vBQ+8, vD)
    if mode == "ring":
        e("s_waitcnt lgkmcnt(0)")
        e(f"s_add_u32 s{sU}, s{sCL}, {BASE}")
        e(f"s_mov_b32 s{sCL}, 1")
        e(f"s_atomic_add s{sCL}, {sr(pCTR,2)}, 0 glc")
        e(f"s_lshr_b32 s{sT2}, s{sU}, 11")
        e(f"s_mul_i32 s{sT2}, s{sT2}, {BATCHB}")
        e(f"s_and_b32 s{sO}, s{sU}, 2047")
        e(f"s_mul_i32 s{sO}, s{sO}, 3072")
        e(f"s_add_u32 s{sO}, s{sO}, s{sT2}")
        e(f"s_add_u32 s{sO}, s{sO}, s{sHB}")
        e(f"s_cmp_lt_u32 s{sU}, {NUNITS}")
        e(f"s_cselect_b32 s{dK+2}, {KVB}, 0")
        e(f"s_cselect_b32 s{dV+2}, {KVB}, 0")
        e(f"s_cselect_b32 s{sO}, s{sO}, 0")
        loadK(slot, sO)
    elif mode == "static":
        loadK(slot, sO)
        e("s_nop 4")
    else:
        e("s_nop 7")
    t = vT
    e(f"v_mov_b32_dpp v{t}, v{vD} quad_perm:[0,0,0,0] {DPPM}")
    e(f"v_add_f32_dpp v{t}, v{vD+1}, v{t} quad_perm:[1,1,1,1] {DPPM}")
    e(f"v_add_f32_dpp v{t}, v{vD+2}, v{t} quad_perm:[2,2,2,2] {DPPM}")
    e(f"v_add_f32_dpp v{t}, v{vD+3}, v{t} quad_perm:[3,3,3,3] {DPPM}")
    rnd_bf16(t)
    e(f"v_mul_f32 v{t}, s{sSCALE}, v{t}")
    rnd_bf16(t)
    e(f"v_cmp_gt_f32 vcc, v{t}, v{vM}")
    e(f"s_cbranch_vccnz L_rare{tag}")
    lab(f"L_back{tag}")
    e(f"v_sub_f32 v{t}, v{t}, v{vM}")
    e(f"v_mul_f32 v{t}, s{sL2E}, v{t}")
    e(f"v_exp_f32 v{t}, v{t}")
    e("s_nop 0")
    e(f"v_cvt_pk_bf16_f32 v{t+1}, v{t}, v{t}")
    e(f"v_add_f32 v{vL}, v{vL}, v{t}")
    for r in range(4):
        e(f"v_and_b32 v{vBP+r}, v{t+1}, v{vMK+r}")
    e(f"s_waitcnt vmcnt({wV})")
    e("s_nop 0")
    for k in range(3):
        mfma(vACC+4*k, slotV(slot)+4*k, vBP, vACC+4*k)
    if mode != "pro":
        loadV(slot, sO)
    rare.append((tag, mode, sU))

unit(0, "static", 9+6*P, 9+6*P, sO=sOa, tag="_s0")
unit(1, "static", 9+6*P, 9+6*P, sO=sOb, tag="_s1")
for k in range(P):
    unit(2+k, "pro", 12+6*(P-k)-3, 12+6*(P-k-1), tag=f"_p{k}")
lines.append(".p2align 6")
lab("L_loop")
unit(0, "ring", 9, 9, sUa, sOa, "_a")
unit(1, "ring", 9, 9, sUb, sOb, "_b")
e("s_branch L_loop")

for tag, mode, sU in rare:
    lab(f"L_rare{tag}")
    t = vT
    e("s_nop 1")
    e(f"v_max_f32_dpp v{t+1}, v{t}, v{t} row_ror:8 {DPPM}")
    swapsum(t+1, t+2, 16, "v_max_f32")
    swapsum(t+1, t+2, 32, "v_max_f32")
    e(f"v_sub_f32 v{t+2}, v{vM}, v{t+1}")
    e(f"v_mul_f32 v{t+2}, s{sL2E}, v{t+2}")
    e(f"v_exp_f32 v{t+2}, v{t+2}")
    e(f"v_mov_b32 v{vM}, v{t+1}")
    e("s_nop 0")
    for r in range(12):
        e(f"v_mul_f32 v{vACC+r}, v{vACC+r}, v{t+2}")
    e(f"v_mul_f32 v{vL}, v{vL}, v{t+2}")
    e(f"s_branch L_back{tag}")
    if mode == "ring":
        lab(f"L_lim{tag}")
        e(f"s_cmp_ge_u32 s{sU}, {NUNITS}")
        e("s_cbranch_scc1 L_sdone")
        flush()
        e(f"s_mov_b32 s{sCB}, 1")
        e(f"s_mov_b32 s{sLIM}, {NUNITS}")
        for t3 in range(3):
            e(f"ds_read_b128 {vr(vBQ+4*t3,4)}, v{vL16} offset:{L_BQ + 3072 + t3*1024}")
        for r in range(12): e(f"v_mov_b32 v{vACC+r}, 0")
        e(f"v_mov_b32 v{vM}, {hx(NEGBIG)}")
        e(f"v_mov_b32 v{vL}, 0")
        e("s_waitcnt lgkmcnt(0)")
        e(f"s_branch L_limback{tag}")

lab("L_sdone")
flush()
stamp(2)
c("publish addresses")
srd(dWS, pWS, W_SIZE)
vA0, vA1, vG = 50, 51, 52
e(f"s_lshl_b32 s{sT0}, s{sWAVE}, 6")
e(f"v_add_u32 v{vT}, s{sT0}, v{vLANE}")
for hf, va in ((0, vA0), (1, vA1)):
    e(f"v_add_u32 v{vT+1}, {192*hf}, v{vT}")
    e(f"v_lshrrev_b32 v{va}, 7, v{vT+1}")
    e(f"v_lshlrev_b32 v{va}, 10, v{va}")
    e(f"v_bfe_u32 v{vT+2}, v{vT+1}, 5, 2")
    e(f"v_lshl_add_u32 v{va}, v{vT+2}, 8, v{va}")
    e(f"v_bfe_u32 v{vT+2}, v{vT+1}, 3, 2")
    e(f"v_lshl_add_u32 v{va}, v{vT+2}, 2, v{va}")
    e(f"v_and_b32 v{vT+2}, 7, v{vT+1}")
    e(f"v_lshl_add_u32 v{va}, v{vT+2}, 4, v{va}")
    if hf: e(f"v_add_u32 v{va}, 128, v{va}")
e(f"s_lshl_b32 s{sT0}, s{sWG}, 11")
e(f"s_add_u32 s{sT0}, s{sT0}, {W_PART}")
e(f"v_lshlrev_b32 v{vG}, 2, v{vT}")
e(f"v_mov_b32 v{vG+1}, 0")
e("s_barrier")
vMM, vLL, vO = 120, 128, 136
for b in range(2):
    e(f"ds_read_b128 {vr(vMM+4*b,4)}, v{vG+1} offset:{L_ML + 32*b}")
    e(f"ds_read_b128 {vr(vLL+4*b,4)}, v{vG+1} offset:{L_ML + 32*b + 16}")
e(f"s_cmp_eq_u32 s{sWAVE}, 3")
e("s_cbranch_scc1 L_pubml")
for b in range(2):
    for w in range(4):
        e(f"ds_read_b32 v{vO+8*b+2*w}, v{vA0} offset:{L_PART + b*12288 + w*3072}")
        e(f"ds_read_b32 v{vO+8*b+2*w+1}, v{vA1} offset:{L_PART + b*12288 + w*3072}")
lab("L_pubml")
e("s_waitcnt lgkmcnt(0)")
for b in range(2):
    m = vMM+4*b
    e(f"v_max3_f32 v{vT+b}, v{m}, v{m+1}, v{m+2}")
    e(f"v_max_f32 v{vT+b}, v{vT+b}, v{m+3}")
    for w in range(4):
        e(f"v_sub_f32 v{m+w}, v{m+w}, v{vT+b}")
        e(f"v_mul_f32 v{m+w}, s{sL2E}, v{m+w}")
        e(f"v_exp_f32 v{m+w}, v{m+w}")
e(f"s_cmp_eq_u32 s{sWAVE}, 3")
e("s_cbranch_scc1 L_pubml2")
for b in range(2):
    m = vMM+4*b
    o = vO+8*b
    for w in range(4):
        e(f"v_add_f32 v{o+2*w}, v{o+2*w}, v{o+2*w+1}")
    e(f"v_mul_f32 v{o}, v{o}, v{m}")
    for w in range(1, 4):
        e(f"v_fmac_f32 v{o}, v{o+2*w}, v{m+w}")
    e(f"v_min_u32 v{o}, -2, v{o}")
    e(f"buffer_store_dword v{o}, v{vG}, {sr(dWS,4)}, s{sT0} offen offset:{1024*b} sc1")
stamp(3)
e("s_endpgm")
lab("L_pubml2")
for b in range(2):
    m, l = vMM+4*b, vLL+4*b
    e(f"v_mul_f32 v{l}, v{l}, v{m}")
    for w in range(1, 4):
        e(f"v_fmac_f32 v{l}, v{l+w}, v{m+w}")
    e(f"v_min_u32 v{vO+2*b}, -2, v{vT+b}")
    e(f"v_min_u32 v{vO+2*b+1}, -2, v{l}")
e("s_mov_b64 exec, 1")
for b in range(2):
    e(f"buffer_store_dwordx2 {vr(vO+2*b,2)}, v{vG}, {sr(dWS,4)}, s{sT0} offen offset:{1024*b} sc1")
e("s_endpgm")

lab("L_service")
vMK2 = 4
vS = 8
e(f"s_sub_u32 s{sSW}, s{sWAVE}, 4")
e(f"v_mov_b32 v{vS}, 0")
e(f"ds_write_b32 v{vS}, v{vS} offset:{L_SYNC}")
e(f"v_lshlrev_b32 v2, 4, v1")
e(f"v_lshrrev_b32 v3, 4, v1")
e("s_waitcnt lgkmcnt(0)")
srd(dWS, pWS, W_SIZE)
srd(dXS, pX, 2560)
stamp(0)
c("role: 0 = wo (rho<5), 1 = ffn1, 2 = red+ffn2, 3 = none")
e(f"s_mov_b32 s{sROLE}, 0")
e(f"s_cmp_lt_u32 s{sRHO}, 5")
e("s_cbranch_scc1 L_sv_noq")
e(f"s_cmp_lt_u32 s{sH}, 24")
e(f"s_cselect_b32 s{sROLE}, 1, 3")
e(f"s_cmp_lt_u32 s{sH}, 20")
e(f"s_cselect_b32 s{sT0}, 2, 3")
e(f"s_cmp_eq_u32 s{sRHO}, 7")
e(f"s_cselect_b32 s{sROLE}, s{sT0}, s{sROLE}")
vXI, vXF, vXT, vXD, vWQ, vQA, vBO = 32, 44, 64, 72, 128, 112, 120
c("x loads (dense) and wq loads")
e(f"v_lshrrev_b32 v{vS}, 5, v1")
e(f"v_and_b32 v{vS+1}, 31, v1")
e(f"v_mul_u32_u24 v{vS+2}, 40, v1")
e(f"buffer_load_dwordx4 {vr(vXI,4)}, v{vS+2}, {sr(dXS,4)}, 0 offen")
e(f"buffer_load_dwordx4 {vr(vXI+4,4)}, v{vS+2}, {sr(dXS,4)}, 0 offen offset:16")
e(f"buffer_load_dwordx2 {vr(vXI+8,2)}, v{vS+2}, {sr(dXS,4)}, 0 offen offset:32")
srd(dA, pWQ, 640*12288)
e(f"v_lshrrev_b32 v{vS+3}, 3, v1")
e(f"v_mul_u32_u24 v{vS+4}, 20, v{vS+3}")
e(f"s_mov_b32 s{sT0}, 12288")
e(f"v_mul_lo_u32 v{vS+5}, v{vS+4}, s{sT0}")
e(f"v_and_b32 v{vS+6}, 7, v1")
e(f"v_lshl_add_u32 v{vS+5}, v{vS+6}, 4, v{vS+5}")
e(f"s_mul_i32 s{sT0}, s{sSW}, {160*12288}")
e(f"s_mul_i32 s{sT1}, s{sH}, 384")
e(f"s_add_u32 s{sT0}, s{sT0}, s{sT1}")
e(f"s_sub_u32 s{sT1}, s{sRHO}, 5")
e(f"s_lshl_b32 s{sT1}, s{sT1}, 7")
e(f"s_add_u32 s{sT0}, s{sT0}, s{sT1}")
for t in range(20):
    e(f"buffer_load_dwordx4 {vr(vWQ+4*t,4)}, v{vS+5}, {sr(dA,4)}, s{sT0} offen nt")
    if t < 19: e(f"s_add_u32 s{sT0}, s{sT0}, 12288")
e("s_barrier")
masks(vMK2, 1, vS+6, vS+7)
e("s_waitcnt vmcnt(20)")
layernorm(vXI, vXF, vXT, vXD, True)
e(f"v_mul_u32_u24 v{vS+6}, 80, v1")
for k in range(5):
    e(f"ds_write_b128 v{vS+6}, {vr(vXD+4*k,4)} offset:{L_XN + 16*k}")
e(f"s_mul_i32 s{sT0}, s{sSW}, 640")
e(f"v_lshlrev_b32 v{vS+6}, 2, v{vS+4}")
e(f"v_add_u32 v{vS+6}, s{sT0}, v{vS+6}")
e("s_waitcnt lgkmcnt(0)")
for b in range(2):
    for k in range(5):
        e(f"ds_read_b128 {vr(vXD+20*b+4*k,4)}, v{vS+6} offset:{L_XN + 2560*b + 16*k}")
e("s_waitcnt lgkmcnt(0)")
for t in range(20):
    for b in range(2):
        for r in range(4):
            e(f"v_and_b32 v{vBO+4*b+r}, v{vXD+20*b+t}, v{vMK2+r}")
    e(f"s_waitcnt vmcnt({19-t})")
    e("s_nop 0")
    for b in range(2):
        mfma(vQA+4*b, vWQ+4*t, vBO+4*b, None if t == 0 else vQA+4*b)
e(f"s_lshl_b32 s{sT0}, s{sSW}, 11")
e(f"v_add_u32 v{vS+6}, s{sT0}, v2")
e("s_nop 7")
for b in range(2):
    e(f"ds_write_b128 v{vS+6}, {vr(vQA+4*b,4)} offset:{L_QRED + 1024*b}")
e(f"v_mov_b32 v{vS+6}, 0")
e(f"v_mov_b32 v{vS+7}, 1")
e("s_waitcnt lgkmcnt(0)")
e("s_mov_b64 exec, 1")
e(f"ds_add_u32 v{vS+6}, v{vS+7} offset:{L_SYNC}")
e("s_mov_b64 exec, -1")
e(f"s_cmp_lg_u32 s{sSW}, 0")
e("s_cbranch_scc1 L_sv_common")
c("wave 4: reduce and publish q")
e(f"v_and_b32 v{vS+8}, 3, v1")
e(f"v_lshlrev_b32 v{vS+8}, 5, v{vS+8}")
e(f"v_bfe_u32 v{vS+9}, v1, 4, 1")
e(f"v_lshl_add_u32 v{vS+8}, v{vS+9}, 8, v{vS+8}")
e(f"v_bfe_u32 v{vS+9}, v1, 2, 2")
e(f"v_lshl_add_u32 v{vS+8}, v{vS+9}, 2, v{vS+8}")
e(f"v_lshl_add_u32 v{vS+8}, v{vS}, 10, v{vS+8}")
e(f"s_cmp_lg_u32 s{sRHO}, 5")
e("s_cbranch_scc1 L_noctr")
e(f"s_lshl_b32 s{sT0}, s{sH}, 8")
e("s_mov_b64 exec, 1")
e(f"buffer_store_dword v{vS+6}, v{vS+6}, {sr(dWS,4)}, s{sT0} offen sc1")
e("s_mov_b64 exec, -1")
lab("L_noctr")
e(f"s_mov_b32 s{sCNT}, {POLL_LIMIT*16}")
lab("L_qspin")
e(f"ds_read_b32 v{vS+9}, v{vS+6} offset:{L_SYNC}")
e("s_waitcnt lgkmcnt(0)")
e(f"v_cmp_eq_u32 vcc, 4, v{vS+9}")
e("s_cbranch_vccnz L_qspin_done")
e(f"s_sub_u32 s{sCNT}, s{sCNT}, 1")
e("s_cbranch_scc0 L_qspin")
lab("L_qspin_done")
for w in range(4):
    for hf in range(2):
        for cc in range(2):
            e(f"ds_read_b32 v{vXD+cc*8+w*2+hf}, v{vS+8} offset:{L_QRED + w*2048 + hf*640 + cc*16}")
e(f"s_mov_b32 s{sT0}, 12288")
e(f"v_mul_lo_u32 v{vS+9}, v{vS}, s{sT0}")
e(f"v_lshl_add_u32 v{vS+9}, v{vS+1}, 2, v{vS+9}")
e(f"s_mul_i32 s{sT0}, s{sH}, 384")
e(f"s_add_u32 s{sT0}, s{sT0}, s{sT1}")
e(f"s_add_u32 s{sT0}, s{sT0}, {W_QBUF}")
e("s_waitcnt lgkmcnt(0)")
for k in range(1, 8):
    e(f"v_add_f32 v{vXD}, v{vXD}, v{vXD+k}")
    e(f"v_add_f32 v{vXD+8}, v{vXD+8}, v{vXD+8+k}")
e(f"v_cvt_pk_bf16_f32 v{vXD}, v{vXD}, v{vXD+8}")
e(f"buffer_store_dword v{vXD}, v{vS+9}, {sr(dWS,4)}, s{sT0} offen sc1")
e(f"s_lshl_b32 s{sT0}, s{sH}, 2")
e(f"v_mov_b32 v{vS+9}, s{sT0}")
e("s_waitcnt vmcnt(0)")
e("s_mov_b64 exec, 1")
e(f"global_atomic_add v{vS+9}, v{vS+7}, {sr(pDBG,2)} sc1")
e("s_mov_b64 exec, -1")
stamp(1)
e("s_branch L_sv_common")
lab("L_sv_noq")
e("s_barrier")
masks(vMK2, 1, vS+6, vS+7)
lab("L_sv_common")
e(f"s_lshl_b32 s{sJ}, s{sH}, 1")
e(f"s_add_u32 s{sJ}, s{sJ}, s{sRHO}")
e(f"s_sub_u32 s{sJ}, s{sJ}, 5")
e(f"s_cmp_eq_u32 s{sROLE}, 2")
e(f"s_cselect_b32 s{sJ}, s{sH}, s{sJ}")
e(f"s_cmp_eq_u32 s{sSW}, 1")
e("s_cbranch_scc1 L_sv_poller")
e(f"s_cmp_eq_u32 s{sSW}, 3")
e("s_cbranch_scc0 L_sv_barB")
c("wave 7: clean own hand-off slots, then signal")
for r in range(4): e(f"v_mov_b32 v{vS+r}, -1")
e(f"s_lshl_b32 s{sT0}, s{sWG}, 11")
e(f"s_add_u32 s{sT0}, s{sT0}, {W_PART}")
e(f"buffer_store_dwordx4 {vr(vS,4)}, v2, {sr(dWS,4)}, s{sT0} offen sc1")
e(f"buffer_store_dwordx4 {vr(vS,4)}, v2, {sr(dWS,4)}, s{sT0} offen offset:1024 sc1")
e(f"v_lshrrev_b32 v{vS+4}, 5, v1")
e(f"v_and_b32 v{vS+5}, 31, v1")
e(f"s_cmp_eq_u32 s{sROLE}, 0")
e("s_cbranch_scc0 L_cl1")
e(f"v_mul_u32_u24 v{vS+6}, 2560, v{vS+4}")
e(f"v_lshl_add_u32 v{vS+6}, v{vS+5}, 4, v{vS+6}")
e(f"s_mul_i32 s{sT0}, s{sH}, 5120")
e(f"s_lshl_b32 s{sT1}, s{sRHO}, 9")
e(f"s_add_u32 s{sT0}, s{sT0}, s{sT1}")
e(f"s_add_u32 s{sT0}, s{sT0}, {W_YBUF}")
e(f"buffer_store_dwordx4 {vr(vS,4)}, v{vS+6}, {sr(dWS,4)}, s{sT0} offen sc1")
e("s_branch L_cl_done")
lab("L_cl1")
e(f"s_cmp_eq_u32 s{sROLE}, 3")
e("s_cbranch_scc1 L_cl_done")
e(f"s_cmp_eq_u32 s{sROLE}, 1")
e(f"s_mov_b32 s{sT0}, {W_HBUF}")
e(f"s_mov_b32 s{sT1}, 1280")
e(f"s_cselect_b32 s{sT0}, {W_ABUF}, s{sT0}")
e(f"s_cselect_b32 s{sT1}, 3072, s{sT1}")
e(f"v_mul_lo_u32 v{vS+6}, v{vS+4}, s{sT1}")
e(f"v_and_b32 v{vS+5}, 15, v1")
e(f"v_lshl_add_u32 v{vS+6}, v{vS+5}, 2, v{vS+6}")
e(f"s_lshl_b32 s{sT1}, s{sJ}, 6")
e(f"s_add_u32 s{sT0}, s{sT0}, s{sT1}")
e(f"buffer_store_dword v{vS}, v{vS+6}, {sr(dWS,4)}, s{sT0} offen sc1")
lab("L_cl_done")
e(f"s_lshl_b32 s{sT0}, s{sX}, 2")
e(f"s_add_u32 s{sT0}, s{sT0}, 128")
e(f"v_mov_b32 v{vS+4}, s{sT0}")
e(f"v_mov_b32 v{vS+5}, 1")
e("s_waitcnt vmcnt(0)")
e("s_mov_b64 exec, 1")
e(f"global_atomic_add v{vS+4}, v{vS+5}, {sr(pDBG,2)} sc1")
e("s_mov_b64 exec, -1")
e("s_branch L_sv_barB")
lab("L_sv_poller")
c("wave 5: wait for q of own head, build the B operands in LDS")
e(f"v_and_b32 v{vS}, 3, v1")
e(f"v_lshlrev_b32 v{vS}, 4, v{vS}")
e(f"v_lshl_add_u32 v{vS}, v3, 6, v{vS}")
e(f"v_bfe_u32 v{vS+1}, v1, 3, 1")
e(f"v_mul_u32_u24 v{vS+1}, 384, v{vS+1}")
e(f"v_sub_u32 v{vS}, v{vS}, v{vS+1}")
e(f"s_mov_b32 s{sT0}, 384")
e(f"v_mov_b32 v{vS+5}, 0x7ffffff0")
for t in range(3):
    e(f"v_add_u32 v{vS+1}, {256*t}, v{vS}")
    e(f"v_cmp_gt_u32 vcc, s{sT0}, v{vS+1}")
    e("s_nop 1")
    e(f"v_cndmask_b32 v{vS+2+t}, v{vS+5}, v{vS+1}, vcc")
e(f"s_lshl_b32 s{sT0}, s{sH}, 2")
e(f"v_mov_b32 v{vS+6}, s{sT0}")
e(f"s_mov_b32 s{sCNT}, {POLL_LIMIT}")
lab("L_qpoll")
e(f"global_load_dword v{vS+7}, v{vS+6}, {sr(pDBG,2)} sc1")
e("s_waitcnt vmcnt(0)")
e(f"v_cmp_eq_u32 vcc, 3, v{vS+7}")
e("s_cbranch_vccnz L_qpoll_done")
e("s_sleep 2")
e(f"s_sub_u32 s{sCNT}, s{sCNT}, 1")
e("s_cbranch_scc0 L_qpoll")
lab("L_qpoll_done")
e(f"s_mul_i32 s{sT0}, s{sH}, 384")
e(f"s_add_u32 s{sT0}, s{sT0}, {W_QBUF}")
e(f"s_add_u32 s{sT1}, s{sT0}, 12288")
for b in range(2):
    for t in range(3):
        e(f"buffer_load_dwordx4 {vr(32+12*b+4*t,4)}, v{vS+2+t}, {sr(dWS,4)}, s{sT0+b} offen sc1")
e("s_waitcnt vmcnt(0)")
for b in range(2):
    for t in range(3):
        e(f"ds_write_b128 v2, {vr(32+12*b+4*t,4)} offset:{L_BQ + 3072*b + 1024*t}")
e("s_waitcnt lgkmcnt(0)")
stamp(1)
lab("L_sv_barB")
e("s_barrier")
vW = 64
e(f"s_mov_b32 s{sSEL0}, 0x05040100")
e(f"s_mov_b32 s{sSEL1}, 0x07060302")
e(f"s_cmp_eq_u32 s{sROLE}, 0")
e("s_cbranch_scc0 L_w1")
c("wo weights: MFMA j: lane (g,i): row 192h + 48sw + 12g + j, cols 128*rho + 8i")
srd(dA, pWO, 6144*1280)
e(f"v_mul_u32_u24 v{vS}, {12*1280}, v3")
e(f"v_and_b32 v{vS+1}, 15, v1")
e(f"v_lshl_add_u32 v{vS}, v{vS+1}, 4, v{vS}")
e(f"s_mul_i32 s{sT0}, s{sH}, {192*1280}")
e(f"s_mul_i32 s{sT1}, s{sSW}, {48*1280}")
e(f"s_add_u32 s{sT0}, s{sT0}, s{sT1}")
e(f"s_lshl_b32 s{sT1}, s{sRHO}, 8")
e(f"s_add_u32 s{sT0}, s{sT0}, s{sT1}")
for j in range(12):
    e(f"buffer_load_dwordx4 {vr(vW+4*j,4)}, v{vS}, {sr(dA,4)}, s{sT0} offen offset:{1280*(j%3)} nt")
    if j % 3 == 2 and j < 11: e(f"s_add_u32 s{sT0}, s{sT0}, 3840")
e("s_branch L_w_done")
lab("L_w1")
def frag_loads(d, rowb, nks, blk0, voff, sbase):
    for s0 in range(0, nks, 6):
        n = min(6, nks - s0)
        for s in range(s0, s0+n):
            for ee in range(8):
                off = (ee % 2) * rowb if rowb <= 2047 else 0
                e(f"buffer_load_dword v{vW+8*(blk0+s+1)+ee}, v{voff}, {sr(d,4)}, s{sbase} offen")
                e(f"s_add_u32 s{sbase}, s{sbase}, {rowb if ee < 7 else rowb*25}")
        e("s_waitcnt vmcnt(0)")
        for s in range(s0, s0+n):
            src, dst = vW+8*(blk0+s+1), vW+8*(blk0+s)
            for q in range(4):
                e(f"v_perm_b32 v{dst+q}, v{src+2*q+1}, v{src+2*q}, s{sSEL0}")
                e(f"v_perm_b32 v{dst+4+q}, v{src+2*q+1}, v{src+2*q}, s{sSEL1}")
e(f"s_cmp_eq_u32 s{sROLE}, 1")
e("s_cbranch_scc0 L_w2")
c("ffn1 weights")
srd(dA, pWG, 640*3072)
srd(dB, pWU, 640*3072)
e(f"v_mul_u32_u24 v{vS}, {8*3072}, v3")
e(f"v_and_b32 v{vS+1}, 15, v1")
e(f"v_lshl_add_u32 v{vS}, v{vS+1}, 2, v{vS}")
e(f"s_mul_i32 s{sT0}, s{sSW}, {160*3072}")
e(f"s_lshl_b32 s{sT1}, s{sJ}, 6")
e(f"s_add_u32 s{sT0}, s{sT0}, s{sT1}")
e(f"s_mov_b32 s{sT1}, s{sT0}")
frag_loads(dA, 3072, 5, 0, vS, sT0)
frag_loads(dB, 3072, 5, 5, vS, sT1)
e("s_branch L_w_done")
lab("L_w2")
e(f"s_cmp_eq_u32 s{sROLE}, 2")
e("s_cbranch_scc0 L_w_done")
c("ffn2 weights + x pair for the residual")
srd(dA, pWD, 1536*1280)
e(f"v_mul_u32_u24 v{vS}, {8*1280}, v3")
e(f"v_and_b32 v{vS+1}, 15, v1")
e(f"v_lshl_add_u32 v{vS}, v{vS+1}, 2, v{vS}")
e(f"s_mul_i32 s{sT0}, s{sSW}, {384*1280}")
e(f"s_lshl_b32 s{sT1}, s{sJ}, 6")
e(f"s_add_u32 s{sT0}, s{sT0}, s{sT1}")
frag_loads(dA, 1280, 12, 0, vS, sT0)
lab("L_w_done")
e(f"s_cmp_lg_u32 s{sSW}, 0")
e("s_cbranch_scc1 L_sv_barC")
c("wave 4: all workgroups have cleaned their slots?")
e(f"v_and_b32 v{vS}, 7, v1")
e(f"v_lshlrev_b32 v{vS}, 2, v{vS}")
e(f"s_mov_b32 s{sCNT}, {POLL_LIMIT}")
lab("L_cpoll")
e(f"global_load_dword v{vS+1}, v{vS}, {sr(pDBG,2)} offset:128 sc1")
e("s_waitcnt vmcnt(0)")
e(f"v_cmp_ne_u32 vcc, 32, v{vS+1}")
e("s_cbranch_vccz L_sv_barC")
e("s_sleep 8")
e(f"s_sub_u32 s{sCNT}, s{sCNT}, 1")
e("s_cbranch_scc0 L_cpoll")
lab("L_sv_barC")
e(f"s_cmp_eq_u32 s{sROLE}, 1")
e("s_cbranch_scc1 L_ffn1")
e(f"s_cmp_eq_u32 s{sROLE}, 2")
e("s_cbranch_scc1 L_red")
e(f"s_cmp_eq_u32 s{sROLE}, 3")
e("s_cbranch_scc0 L_wo")
e("s_barrier")
e("s_endpgm")

lab("L_wo")
vPO, vML, vY, vB2 = 32, 44, 48, 52
e(f"v_and_b32 v{vS}, 7, v1")
e(f"v_lshlrev_b32 v{vS}, 11, v{vS}")
e(f"v_bfe_u32 v{vS+1}, v1, 3, 1")
e(f"v_lshl_add_u32 v{vS}, v{vS+1}, 10, v{vS}")
e(f"v_mul_u32_u24 v{vS+1}, 48, v3")
e(f"v_add_u32 v{vS+1}, v{vS+1}, v{vS}")
e(f"s_lshl_b32 s{sT0}, s{sH}, 14")
e(f"s_add_u32 s{sT0}, s{sT0}, {W_PART}")
e(f"s_mul_i32 s{sT1}, s{sSW}, 192")
e(f"s_add_u32 s{sT1}, s{sT1}, s{sT0}")
e(f"s_lshl_b32 s{sT2}, s{sSW}, 6")
e(f"v_add_u32 v{vS+2}, s{sT2}, v1")
e(f"v_and_b32 v{vS+3}, 7, v{vS+2}")
e(f"v_lshlrev_b32 v{vS+3}, 4, v{vS+3}")
e(f"v_bfe_u32 v{vS+4}, v{vS+2}, 3, 2")
e(f"v_lshl_add_u32 v{vS+3}, v{vS+4}, 2, v{vS+3}")
e(f"v_bfe_u32 v{vS+4}, v{vS+2}, 5, 2")
e(f"v_lshl_add_u32 v{vS+3}, v{vS+4}, 8, v{vS+3}")
e(f"v_lshrrev_b32 v{vS+4}, 7, v{vS+2}")
e(f"v_lshl_add_u32 v{vS+3}, v{vS+4}, 7, v{vS+3}")
e(f"v_mul_u32_u24 v{vS+4}, 2560, v{vS+4}")
e(f"v_and_b32 v{vS+5}, 127, v{vS+2}")
e(f"v_lshl_add_u32 v{vS+4}, v{vS+5}, 2, v{vS+4}")
e(f"s_mul_i32 s{sT2}, s{sH}, 5120")
e(f"s_lshl_b32 s{sT3}, s{sRHO}, 9")
e(f"s_add_u32 s{sT2}, s{sT2}, s{sT3}")
e(f"s_add_u32 s{sT2}, s{sT2}, {W_YBUF}")
e(f"s_lshl_b32 s{sT3}, s{sSW}, 10")
e(f"v_add_u32 v{vS+5}, s{sT3}, v2")
e("s_waitcnt vmcnt(0)")
e("s_barrier")
stamp(2)
poll([f"buffer_load_dwordx4 {vr(vPO+4*k,4)}, v{vS+1}, {sr(dWS,4)}, s{sT1} offen offset:{16*k} sc1" for k in range(3)]
     + [f"buffer_load_dwordx2 {vr(vML,2)}, v{vS}, {sr(dWS,4)}, s{sT0} offen offset:768 sc1"],
     range(vPO, vPO+14), vS+6)
stamp(3)
R8 = ["quad_perm:[1,0,3,2]", "quad_perm:[2,3,0,1]", "row_half_mirror"]
t = vS+6
e(f"v_max_f32_dpp v{t}, v{vML}, v{vML} {R8[0]} {DPPM}")
for k in (1, 2):
    e("s_nop 1")
    e(f"v_max_f32_dpp v{t}, v{t}, v{t} {R8[k]} {DPPM}")
e(f"v_sub_f32 v{t}, v{vML}, v{t}")
e(f"v_mul_f32 v{t}, s{sL2E}, v{t}")
e(f"v_exp_f32 v{t}, v{t}")
e("s_nop 0")
e(f"v_mul_f32 v{t+1}, v{t}, v{vML+1}")
for k in range(3):
    e("s_nop 1")
    e(f"v_add_f32_dpp v{t+1}, v{t+1}, v{t+1} {R8[k]} {DPPM}")
e(f"v_rcp_f32 v{t+1}, v{t+1}")
e("s_nop 0")
e(f"v_mul_f32 v{t}, v{t}, v{t+1}")
for j in range(12): e(f"v_mul_f32 v{vPO+j}, v{vPO+j}, v{t}")
for k in range(3):
    for j in range(12):
        e(f"v_add_f32_dpp v{vPO+j}, v{vPO+j}, v{vPO+j} {R8[k]} {DPPM}")
for j in range(12): e(f"v_cvt_pk_bf16_f32 v{vPO+j}, v{vPO+j}, v{vPO+j}")
for r in range(4): e(f"v_and_b32 v{vB2+r}, v{vPO}, v{vMK2+r}")
for j in range(12):
    if j < 11:
        for r in range(4): e(f"v_and_b32 v{vB2+4*((j+1)%2)+r}, v{vPO+j+1}, v{vMK2+r}")
    else:
        e("s_nop 1")
    mfma(vY, vW+4*j, vB2+4*(j%2), None if j == 0 else vY)
e("s_nop 7")
e(f"ds_write_b128 v{vS+5}, {vr(vY,4)} offset:{L_RED}")
e("s_waitcnt lgkmcnt(0)")
e("s_barrier")
for w in range(4):
    e(f"ds_read_b32 v{vPO+w}, v{vS+3} offset:{L_RED + 1024*w}")
e("s_waitcnt lgkmcnt(0)")
e(f"v_add_f32 v{vPO}, v{vPO}, v{vPO+1}")
e(f"v_add_f32 v{vPO+2}, v{vPO+2}, v{vPO+3}")
e(f"v_add_f32 v{vPO}, v{vPO}, v{vPO+2}")
e(f"v_min_u32 v{vPO}, -2, v{vPO}")
e(f"buffer_store_dword v{vPO}, v{vS+4}, {sr(dWS,4)}, s{sT2} offen sc1")
stamp(4)
e("s_endpgm")

lab("L_ffn1")
vHI, vHF, vHT, vAF, vAC = 32, 176, 44, 196, 216
e(f"v_mul_u32_u24 v{vS}, 40, v1")
e(f"v_and_b32 v{vS+1}, 1, v1")
e(f"v_mul_u32_u24 v{vS+1}, 1280, v{vS+1}")
e(f"v_lshl_add_u32 v{vS+1}, v3, 4, v{vS+1}")
e(f"s_mul_i32 s{sT0}, s{sSW}, 320")
e(f"v_add_u32 v{vS+1}, s{sT0}, v{vS+1}")
e(f"v_lshlrev_b32 v{vS+2}, 3, v1")
e(f"s_lshl_b32 s{sT0}, s{sSW}, 9")
e(f"v_add_u32 v{vS+2}, s{sT0}, v{vS+2}")
def final_addr(dst, tmp):
    e(f"v_and_b32 v{dst}, 1, v1")
    e(f"v_lshlrev_b32 v{dst}, 7, v{dst}")
    e(f"v_bfe_u32 v{tmp}, v1, 1, 4")
    e(f"v_lshl_add_u32 v{dst}, v{tmp}, 3, v{dst}")
    e(f"v_lshrrev_b32 v{tmp}, 5, v1")
    e(f"v_lshl_add_u32 v{dst}, v{tmp}, 2, v{dst}")
final_addr(vS+3, vS+4)
e(f"v_mul_u32_u24 v{vS+4}, 3072, v{vS+4}")
e(f"v_and_b32 v{vS+5}, 31, v1")
e(f"v_lshl_add_u32 v{vS+4}, v{vS+5}, 1, v{vS+4}")
e(f"s_lshl_b32 s{sT1}, s{sJ}, 6")
e(f"s_add_u32 s{sT1}, s{sT1}, {W_ABUF}")
e(f"s_mov_b32 s{sT0}, {W_HBUF}")
e("s_barrier")
e(f"s_cmp_lg_u32 s{sSW}, 0")
e("s_cbranch_scc1 L_f1_wait")
stamp(2)
poll([f"buffer_load_dwordx4 {vr(vHI,4)}, v{vS}, {sr(dWS,4)}, s{sT0} offen sc1",
      f"buffer_load_dwordx4 {vr(vHI+4,4)}, v{vS}, {sr(dWS,4)}, s{sT0} offen offset:16 sc1",
      f"buffer_load_dwordx2 {vr(vHI+8,2)}, v{vS}, {sr(dWS,4)}, s{sT0} offen offset:32 sc1"],
     range(vHI, vHI+10), vS+6)
stamp(3)
layernorm(vHI, vHF, vHT, vHI, False)
for k in range(5):
    e(f"ds_write_b64 v{vS}, {vr(vHI+2*k,2)} offset:{L_XN2 + 8*k}")
e("s_waitcnt lgkmcnt(0)")
lab("L_f1_wait")
e("s_barrier")
for s in range(5):
    e(f"ds_read_b128 {vr(vAF+4*s,4)}, v{vS+1} offset:{L_XN2 + 64*s}")
for s in range(5):
    e(f"s_waitcnt lgkmcnt({4-s})")
    for mat in range(2):
        for par in range(2):
            mfma(vAC+4*(2*mat+par), vAF+4*s, vW+8*(5*mat+s)+4*par, None if s == 0 else vAC+4*(2*mat+par))
e("s_nop 7")
e("s_mov_b64 exec, 0xffff")
for a in range(4):
    e(f"ds_write_b64 v{vS+2}, {vr(vAC+4*a,2)} offset:{L_RED + 128*a}")
e("s_mov_b64 exec, -1")
e("s_waitcnt lgkmcnt(0)")
e("s_barrier")
e(f"s_cmp_lg_u32 s{sSW}, 0")
e("s_cbranch_scc1 L_end")
for w in range(4):
    e(f"ds_read_b32 v{vHI+w}, v{vS+3} offset:{L_RED + 512*w}")
    e(f"ds_read_b32 v{vHI+4+w}, v{vS+3} offset:{L_RED + 512*w + 256}")
e("s_waitcnt lgkmcnt(0)")
g_, u_ = vHI, vHI+4
for base in (g_, u_):
    e(f"v_add_f32 v{base}, v{base}, v{base+1}")
    e(f"v_add_f32 v{base+2}, v{base+2}, v{base+3}")
    e(f"v_add_f32 v{base}, v{base}, v{base+2}")
    rnd_bf16(base)
C1 = -2.0 * 1.4426950408889634 * 0.7978845608028654
e(f"v_mul_f32 v{g_+1}, v{g_}, v{g_}")
e(f"v_mov_b32 v{g_+2}, {hx(f32(C1))}")
e(f"v_fmac_f32 v{g_+2}, {hx(f32(C1*0.044715))}, v{g_+1}")
e(f"v_mul_f32 v{g_+2}, v{g_+2}, v{g_}")
e(f"v_exp_f32 v{g_+2}, v{g_+2}")
e("s_nop 0")
e(f"v_add_f32 v{g_+2}, 1.0, v{g_+2}")
e(f"v_rcp_f32 v{g_+2}, v{g_+2}")
e("s_nop 0")
e(f"v_mul_f32 v{g_}, v{g_}, v{g_+2}")
rnd_bf16(g_)
e(f"v_mul_f32 v{g_}, v{g_}, v{u_}")
e("s_nop 1")
e(f"v_mov_b32_dpp v{g_+1}, v{g_} quad_perm:[1,0,3,2] {DPPM}")
e(f"v_cvt_pk_bf16_f32 v{g_}, v{g_}, v{g_+1}")
e(f"v_min_u32 v{g_}, -2, v{g_}")
e("s_mov_b32 exec_lo, 0x55555555")
e("s_mov_b32 exec_hi, 0x55555555")
e(f"buffer_store_dword v{g_}, v{vS+4}, {sr(dWS,4)}, s{sT1} offen sc1")
e("s_mov_b64 exec, -1")
stamp(4)
e("s_endpgm")

lab("L_red")
vYA, vXP, vAI, vAF2, vAC2 = 32, 40, 44, 176, 224
e(f"v_lshrrev_b32 v{vS}, 1, v1")
e(f"v_mul_u32_u24 v{vS}, 2560, v{vS}")
e(f"v_and_b32 v{vS+1}, 1, v1")
e(f"v_lshl_add_u32 v{vS}, v{vS+1}, 4, v{vS}")
e(f"s_lshl_b32 s{sT0}, s{sJ}, 7")
e(f"s_lshl_b32 s{sT1}, s{sSW}, 5")
e(f"s_add_u32 s{sT0}, s{sT0}, s{sT1}")
e(f"s_add_u32 s{sT0}, s{sT0}, {W_YBUF}")
e(f"s_add_u32 s{sT1}, s{sT0}, 81920")
e(f"v_lshlrev_b32 v{vS+1}, 3, v{vS+1}")
e(f"v_lshrrev_b32 v{vS+2}, 5, v1")
e(f"v_lshl_add_u32 v{vS+1}, v{vS+2}, 2, v{vS+1}")
e(f"s_lshl_b32 s{sT2}, s{sSW}, 4")
e(f"v_add_u32 v{vS+1}, s{sT2}, v{vS+1}")
e(f"v_bfe_u32 v{vS+2}, v1, 1, 1")
e(f"v_lshl_add_u32 v{vS+3}, v{vS+2}, 6, v{vS+1}")
e(f"v_mul_u32_u24 v{vS+2}, 1280, v{vS+2}")
e(f"v_add_u32 v{vS+1}, v{vS+1}, v{vS+2}")
e(f"s_lshl_b32 s{sT2}, s{sJ}, 6")
e(f"buffer_load_dword v{vXP}, v{vS+1}, {sr(dXS,4)}, s{sT2} offen")
e(f"s_add_u32 s{sT3}, s{sT2}, {W_HBUF}")
e(f"v_lshrrev_b32 v{vS+4}, 5, v1")
e(f"v_and_b32 v{vS+5}, 31, v1")
e(f"v_mul_u32_u24 v{vS+5}, 24, v{vS+5}")
e(f"v_mul_u32_u24 v{vS+4}, 3072, v{vS+4}")
e(f"v_add_u32 v{vS+4}, v{vS+4}, v{vS+5}")
e(f"s_mul_i32 s{sT4}, s{sSW}, 768")
e(f"v_add_u32 v{vS+4}, s{sT4}, v{vS+4}")
e(f"v_and_b32 v{vS+5}, 1, v1")
e(f"v_mul_u32_u24 v{vS+5}, 3072, v{vS+5}")
e(f"v_lshl_add_u32 v{vS+5}, v3, 4, v{vS+5}")
e(f"v_add_u32 v{vS+5}, s{sT4}, v{vS+5}")
e(f"v_lshlrev_b32 v{vS+7}, 3, v1")
e(f"s_lshl_b32 s{sT4}, s{sSW}, 8")
e(f"v_add_u32 v{vS+7}, s{sT4}, v{vS+7}")
final_addr(vS+8, vS+9)
e(f"v_mul_u32_u24 v{vS+9}, 1280, v{vS+9}")
e(f"v_and_b32 v{vS+10}, 31, v1")
e(f"v_lshl_add_u32 v{vS+9}, v{vS+10}, 1, v{vS+9}")
e(f"v_lshlrev_b32 v{vS+10}, 1, v1")
e(f"s_mov_b32 s{sT4}, {W_ABUF}")
srd(dO, pOUT, 2560)
e("s_waitcnt vmcnt(0)")
e(f"v_lshlrev_b32 v{vXP+1}, 16, v{vXP}")
e(f"v_and_b32 v{vXP+2}, 0xffff0000, v{vXP}")
e("s_barrier")
stamp(2)
poll([f"buffer_load_dwordx4 {vr(vYA,4)}, v{vS}, {sr(dWS,4)}, s{sT0} offen sc1",
      f"buffer_load_dwordx4 {vr(vYA+4,4)}, v{vS}, {sr(dWS,4)}, s{sT1} offen sc1"],
     range(vYA, vYA+8), vS+6)
stamp(3)
for r in range(4): e(f"v_add_f32 v{vYA+r}, v{vYA+r}, v{vYA+4+r}")
e("s_nop 1")
e(f"v_permlane32_swap_b32 v{vYA}, v{vYA+2}")
e(f"v_permlane32_swap_b32 v{vYA+1}, v{vYA+3}")
e("s_nop 1")
e(f"v_add_f32 v{vYA}, v{vYA}, v{vYA+2}")
e(f"v_add_f32 v{vYA+1}, v{vYA+1}, v{vYA+3}")
e(f"v_mov_b32 v{vYA+2}, v{vYA}")
e(f"v_mov_b32 v{vYA+3}, v{vYA+1}")
e("s_nop 1")
e(f"v_permlane16_swap_b32 v{vYA}, v{vYA+2}")
e(f"v_permlane16_swap_b32 v{vYA+1}, v{vYA+3}")
e("s_nop 1")
e(f"v_add_f32 v{vYA}, v{vYA}, v{vYA+2}")
e(f"v_add_f32 v{vYA+1}, v{vYA+1}, v{vYA+3}")
for r in (8, 4):
    e("s_nop 0")
    e(f"v_add_f32_dpp v{vYA}, v{vYA}, v{vYA} row_ror:{r} {DPPM}")
    e("s_nop 0")
    e(f"v_add_f32_dpp v{vYA+1}, v{vYA+1}, v{vYA+1} row_ror:{r} {DPPM}")
e(f"v_cvt_pk_bf16_f32 v{vYA}, v{vYA}, v{vYA+1}")
e(f"v_and_b32 v{vYA+1}, 0xffff0000, v{vYA}")
e(f"v_lshlrev_b32 v{vYA}, 16, v{vYA}")
e(f"v_add_f32 v{vYA}, v{vYA}, v{vXP+1}")
e(f"v_add_f32 v{vYA+1}, v{vYA+1}, v{vXP+2}")
e(f"v_cvt_pk_bf16_f32 v{vYA}, v{vYA}, v{vYA+1}")
e(f"v_min_u32 v{vYA}, -2, v{vYA}")
e("s_mov_b32 exec_lo, 15")
e("s_mov_b32 exec_hi, 15")
e(f"buffer_store_dword v{vYA}, v{vS+1}, {sr(dWS,4)}, s{sT3} offen sc1")
e(f"ds_write_b32 v{vS+3}, v{vYA} offset:{L_H}")
e("s_mov_b64 exec, -1")
stamp(4)
poll([f"buffer_load_dwordx2 {vr(vAI+2*k,2)}, v{vS+4}, {sr(dWS,4)}, s{sT4} offen offset:{8*k} sc1" for k in range(3)],
     range(vAI, vAI+6), vS+6)
stamp(5)
for k in range(3):
    e(f"ds_write_b64 v{vS+4}, {vr(vAI+2*k,2)} offset:{L_ACT + 8*k}")
e("s_waitcnt lgkmcnt(0)")
for s in range(12):
    e(f"ds_read_b128 {vr(vAF2+4*s,4)}, v{vS+5} offset:{L_ACT + 64*s}")
for s in range(12):
    e(f"s_waitcnt lgkmcnt({11-s})")
    for par in range(2):
        mfma(vAC2+4*par, vAF2+4*s, vW+8*s+4*par, None if s == 0 else vAC2+4*par)
e("s_nop 7")
e("s_mov_b64 exec, 0xffff")
for a in range(2):
    e(f"ds_write_b64 v{vS+7}, {vr(vAC2+4*a,2)} offset:{L_RED + 128*a}")
e("s_mov_b64 exec, -1")
e("s_waitcnt lgkmcnt(0)")
e("s_barrier")
e(f"s_cmp_lg_u32 s{sSW}, 0")
e("s_cbranch_scc1 L_end")
for w in range(4):
    e(f"ds_read_b32 v{vYA+w}, v{vS+8} offset:{L_RED + 256*w}")
e(f"ds_read_u16 v{vYA+4}, v{vS+10} offset:{L_H}")
e("s_waitcnt lgkmcnt(0)")
e(f"v_add_f32 v{vYA}, v{vYA}, v{vYA+1}")
e(f"v_add_f32 v{vYA+2}, v{vYA+2}, v{vYA+3}")
e(f"v_add_f32 v{vYA}, v{vYA}, v{vYA+2}")
rnd_bf16(vYA)
e(f"v_lshlrev_b32 v{vYA+4}, 16, v{vYA+4}")
e(f"v_add_f32 v{vYA}, v{vYA}, v{vYA+4}")
e("s_nop 1")
e(f"v_mov_b32_dpp v{vYA+1}, v{vYA} quad_perm:[1,0,3,2] {DPPM}")
e(f"v_cvt_pk_bf16_f32 v{vYA}, v{vYA}, v{vYA+1}")
e("s_mov_b32 exec_lo, 0x55555555")
e("s_mov_b32 exec_hi, 0x55555555")
e(f"buffer_store_dword v{vYA}, v{vS+9}, {sr(dO,4)}, s{sT2} offen")
e("s_mov_b64 exec, -1")
stamp(6)
lab("L_end")
e("s_endpgm")

lines.append(f""".section .rodata,"a"
.p2align 6
.amdhsa_kernel {NAME}_kernel
  .amdhsa_next_free_vgpr 256
  .amdhsa_next_free_sgpr 96
  .amdhsa_accum_offset 256
  .amdhsa_group_segment_fixed_size 0
  .amdhsa_kernarg_size 96
  .amdhsa_user_sgpr_count 2
  .amdhsa_user_sgpr_kernarg_segment_ptr 1
  .amdhsa_system_sgpr_workgroup_id_x 1
.end_amdhsa_kernel""")
open(OUT, "w").write("\n".join(lines) + "\n")
print("wrote", OUT, len(lines), "lines")
```
